```python
import torch

def _softmax(x, axis=-1):
    return torch.softmax(x, dim=axis)
def _gelu(x):
    return torch.nn.functional.gelu(x, approximate="tanh")
def _silu(x):
    return torch.nn.functional.silu(x)
def _sigmoid(x):
    return torch.sigmoid(x)
def _layernorm(x, axis=-1, eps=1e-5):
    m = x.mean(dim=axis, keepdim=True)
    v = x.var(dim=axis, keepdim=True, unbiased=False)
    return (x - m) / torch.sqrt(v + eps)
def _scatter_add(tgt, idx, src, axis=0):
    return tgt.clone().index_add_(axis, idx, src)
def _segment_sum(src, seg, n):
    out = torch.zeros((n,) + src.shape[1:], dtype=src.dtype)
    return out.index_add_(0, seg, src)
def _pad(x, pw):
    flat = tuple(v for pair in reversed(pw) for v in pair)
    return torch.nn.functional.pad(x, flat)

kernel_name = 'interleave_layers__ssm_conv_h3__glu_gated_swiglu__prompt'

def setup_inputs():

    _w = (lambda a: (lambda t: t.to(torch.bfloat16) if t.is_floating_point() else t)(torch.as_tensor(a)))
    def _A_setup():
        B, S, D = 1, 2048, 512
        ks = 4
        return {
            "q": _w((lambda *s: torch.randn(*s, dtype=torch.bfloat16) * 0.05)(B, S, D)),
            "k": _w((lambda *s: torch.randn(*s, dtype=torch.bfloat16) * 0.2)(B, S, D)),
            "v": _w((lambda *s: torch.randn(*s, dtype=torch.bfloat16) * 0.2)(B, S, D)),
            "shift_k": _w((lambda *s: torch.randn(*s, dtype=torch.bfloat16) * 0.2)(D, ks) * 0.5),
            "ssm_k": _w((lambda *s: torch.randn(*s, dtype=torch.bfloat16) * 0.4)(D, S) * (1.0 / S ** 0.5)),
            "ssm_D": _w((lambda *s: torch.randn(*s, dtype=torch.bfloat16) * 0.2)(D)),
        }
    _A_in = _A_setup()

    def _B_setup():
        B, S, D, F = 1, 2048, 512, 1376
        return {
            "x": _w((lambda *s: torch.randn(*s, dtype=torch.bfloat16) * 0.05)(B, S, D)),
            "w1": _w((lambda *s: torch.randn(*s, dtype=torch.bfloat16) * 0.2)(D, F) * (2.0 / D) ** 0.5),
            "w3": _w((lambda *s: torch.randn(*s, dtype=torch.bfloat16) * 0.2)(D, F) * (2.0 / D) ** 0.5),
            "w2": _w((lambda *s: torch.randn(*s, dtype=torch.bfloat16) * 0.2)(F, D) * (2.0 / F) ** 0.5),
        }
    _B_in = _B_setup()

    return {
        "A_q": _A_in["q"],
        "A_k": _A_in["k"],
        "A_v": _A_in["v"],
        "A_shift_k": _A_in["shift_k"],
        "A_ssm_k": _A_in["ssm_k"],
        "A_ssm_D": _A_in["ssm_D"],
        "B_x": _B_in["x"],
        "B_w1": _B_in["w1"],
        "B_w3": _B_in["w3"],
        "B_w2": _B_in["w2"],
    }

def reference(A_q, A_k, A_v, A_shift_k, A_ssm_k, A_ssm_D, B_x, B_w1, B_w3, B_w2):
    def _A_ref(q, k, v, shift_k, ssm_k, ssm_D):
        B, S, D = q.shape
        ks = shift_k.shape[-1]
        k_pad = _pad(k, ((0, 0), (ks - 1, 0), (0, 0)))
        k_shift = torch.zeros_like(k)
        for t in range(ks):
            k_shift = k_shift + k_pad[:, t:t + S, :] * shift_k[:, ks - 1 - t][None, None, :]
        kv = k_shift * v
        L = 2 * S
        kv_pad = _pad(kv, ((0, 0), (0, S), (0, 0)))
        kf_pad = _pad(ssm_k, ((0, 0), (0, S)))
        kv_f = (lambda x, axes=(-2,-1): torch.fft.rfft2(x.float(), dim=axes))(kv_pad[:, None, :, :], axes=(1, 2))
        kf_f = (lambda x, axes=(-2,-1): torch.fft.rfft2(x.float(), dim=axes))(kf_pad[:, None, :], axes=(1, 2))
        kf_f = (lambda x, *d: x.permute(*d))(kf_f, 1, 2, 0)
        y_f = kv_f * kf_f[None, :, :, :]
        y = (lambda x, s, axes=(-2,-1): torch.fft.irfft2(x, s=s, dim=axes).to(torch.bfloat16))(y_f, (1, L), axes=(1, 2))[:, 0, :S, :]
        y = y + kv * ssm_D[None, None, :]
        return q * y

    def _B_ref(x, w1, w3, w2):
        gate = torch.einsum("bsd,df->bsf", x, w1)
        up = torch.einsum("bsd,df->bsf", x, w3)
        h = _silu(gate) * up
        out = torch.einsum("bsf,fd->bsd", h, w2)
        return out

    x = A_q
    x = x + _A_ref(_layernorm(x, axis=-1), A_k, A_v, A_shift_k, A_ssm_k, A_ssm_D)
    x = x + _B_ref(_layernorm(x, axis=-1), B_w1, B_w3, B_w2)
    x = x + _A_ref(_layernorm(x, axis=-1), A_k, A_v, A_shift_k, A_ssm_k, A_ssm_D)
    x = x + _B_ref(_layernorm(x, axis=-1), B_w1, B_w3, B_w2)
    return x
```

```python
KNAME = 'interleave_layers__ssm_conv_h3__glu_gated_swiglu__prompt_kernel'

HDR = """; Kernarg layout for this problem (104 bytes, ptrs only, base s[0:1]):
"""

class Asm:
    def __init__(self):
        self.lines = []
        self.launches = []
        self.kds = []
        self.uid = 0
    def __call__(self, s=''):
        for l in s.split('\n'):
            self.lines.append(l)
    def e(self, s):
        self.lines.append('    ' + s)
    def label(self, name):
        self.lines.append(name + ':')
    def newlabel(self, base='L'):
        self.uid += 1
        return f'{base}_{self.uid}'
    def begin_kernel(self, name):
        self.lines += ['.text', f'.globl {name}', '.p2align 8', f'.type {name},@function', f'{name}:']
    def end_kernel(self, name, vgpr, sgpr=102, accum=None, wg_y=False):
        if accum is None:
            accum = min(256, (vgpr + 3) // 4 * 4)
        self.lines.append('    s_endpgm')
        kd = ['.section .rodata,"a"', '.p2align 6', f'.amdhsa_kernel {name}',
              f'  .amdhsa_next_free_vgpr {vgpr}', f'  .amdhsa_next_free_sgpr {sgpr}',
              f'  .amdhsa_accum_offset {accum}', '  .amdhsa_group_segment_fixed_size 0',
              '  .amdhsa_kernarg_size 104', '  .amdhsa_user_sgpr_count 2',
              '  .amdhsa_user_sgpr_kernarg_segment_ptr 1', '  .amdhsa_system_sgpr_workgroup_id_x 1']
        if wg_y:
            kd.append('  .amdhsa_system_sgpr_workgroup_id_y 1')
        kd += ['  .amdhsa_float_denorm_mode_32 3', '  .amdhsa_float_denorm_mode_16_64 3', '.end_amdhsa_kernel']
        self.kds.append('\n'.join(kd))
    def launch(self, name, grid, block, lds=0):
        self.launches.append((name, grid, block, lds))
    def text(self, single=False):
        out = HDR
        if single:
            name, g, b, lds = self.launches[0]
            out += f'; @launch grid=({g[0]},{g[1]},{g[2]}) block=({b[0]},{b[1]},{b[2]}) lds={lds}\n'
        else:
            for name, g, b, lds in self.launches:
                out += f'; @launch kernel={name} grid=({g[0]},{g[1]},{g[2]}) block=({b[0]},{b[1]},{b[2]}) lds={lds}\n'
        out += '.amdgcn_target "amdgcn-amd-amdhsa--gfx950"\n'
        out += '\n'.join(self.lines) + '\n'
        out += '\n'.join(self.kds) + '\n'
        return out
    def srd(self, s, base, nbytes):
        self.e(f's_mov_b32 s{s}, s{base}')
        self.e(f's_and_b32 s{s+1}, s{base+1}, 0xffff')
        self.e(f's_mov_b32 s{s+2}, {nbytes}')
        self.e(f's_mov_b32 s{s+3}, 0x00020000')
```

```python
import sys
sys.path.insert(0, 'tools')
from asmgen import Asm, KNAME

FLG   = 0x00000
PFLG  = 0x10000
GFLG  = 0x18000
GBA   = (0x20000, 0x28000)
GBG   = (0x30000, 0x38000)
GBD   = (0x18000, 0x18800)
STAMP = 0x40000
KVT   = 0x100000
Y2    = 0x300000
N1    = 0x500000
O1    = 0x900000
X3    = 0xB00000
H1    = 0xD00000
W13F  = 0x1900000
W2F   = 0x1C00000
WSSZ  = 0x2000000
N2, H2 = N1, H1
HC    = 0
HC_CP = 4128
HC_CH = 4*HC_CP
XR    = 33280
XR_CH = 4608
KVS   = 42496
KVP   = 132
KVS_V = KVS + 68*KVP
FMT   = KVS
MBX   = 64768
CNT1  = 64784
CNT2  = 64800
GDONE = 64816
FDONE = 64880
WRDY  = 64832
RED   = 0
WIM   = 65536
YCNT  = 64848
RCNT  = 64896
YSC   = 2048
SCR_P = 1040
NTR   = 64
RSC   = 0
LDS_BYTES = 163840
S_G, S_J, S_W, S_LAYER = 4, 5, 6, 7
WS, Q, K, V, SK, HK, W1, W3, W2, OUT, DBG = 8, 12, 16, 20, 24, 28, 32, 36, 40, 44, 48
S_DP = 52
S_SG, S_U = 52, 53
S_T = 54
S_FO = 92
S_D0, S_D1 = 93, 94
S_SJ = 95
S_MODE = 96
S_PH = 97
S_CNT = 98
S_XCC = 99
S_NONCE = 90
S_C1 = 31
S_FL = 30
S_RC = 91
S_HMODE = 94
V_LANE, V_L16 = 0, 1
V_W2 = 160
V_X = 248
V_Y = 252
V_TID = 159
V_P0 = 152

def srd(r): return f's[{r}:{r+3}]'
def vr(r, n): return f'v[{r}:{r+n-1}]' if n > 1 else f'v{r}'

class Gen(Asm):
    def __init__(self, stop=None, stamps=False, fast=False, stamp_filter=None, opts=()):
        super().__init__()
        self.stop = stop
        self.stamps = stamps
        self.stamp_filter = stamp_filter
        self.nstamp = 0
        self.stamp_names = []
        self.fast = fast
        self.opts = set(opts)
        self.PA = 8
        self.PB = 6
        self.WD = 8
        self.FSTART = 0
        for o in opts:
            if o.startswith('PA='): self.PA = int(o[3:])
            if o.startswith('PB='): self.PB = int(o[3:])
            if o.startswith('WD='): self.WD = int(o[3:])
            if o.startswith('FS='): self.FSTART = int(o[3:])
    def c(self, s): self.lines.append('    ; ' + s)
    def nop(self, n):
        while n > 0:
            k = min(n, 16); self.e(f's_nop {k-1}'); n -= k
    def stamp(self, name=''):
        if not self.stamps: return
        if self.stamp_filter is not None and name not in self.stamp_filter: return
        if name in self.stamp_names:
            i = self.stamp_names.index(name)
        else:
            i = self.nstamp; self.nstamp += 1
            self.stamp_names.append(name)
            assert i < 13
        self.e(f's_memrealtime s[{64+2*i}:{65+2*i}]')
    def dump_stamps(self):
        if not self.stamps: return
        e = self.e
        e('s_waitcnt lgkmcnt(0)')
        e(f's_lshl_b32 s{S_T}, s2, 3')
        e(f's_add_u32 s{S_T}, s{S_T}, s{S_W}')
        e(f's_lshl_b32 s{S_T}, s{S_T}, 7')
        e(f's_add_u32 s{S_T}, s{S_T}, {STAMP}')
        e(f'v_mov_b32 v3, 0')
        e(f's_mov_b64 exec, 1')
        e(f'v_mov_b32 v2, s100')
        e(f'buffer_store_dword v2, v3, {srd(WS)}, s{S_T} offen')
        for i in range(self.nstamp):
            e(f'v_mov_b32 v2, s{64+2*i}')
            e(f'buffer_store_dword v2, v3, {srd(WS)}, s{S_T} offen offset:{4+4*i}')
        e(f'v_mov_b32 v2, s{S_MODE}')
        e(f'buffer_store_dword v2, v3, {srd(WS)}, s{S_T} offen offset:124')
        e(f's_mov_b64 exec, -1')
        e('s_waitcnt vmcnt(0)')
    def hstores(self, lines, mode=None):
        mode = S_MODE if mode is None else mode
        if not self.fast or mode == 'sc1':
            for l in lines: self.e(l + ' sc1')
            return
        Ls = self.newlabel('L_hs'); Le = Ls + '_e'
        self.e(f's_cmp_eq_u32 s{mode}, 0')
        self.e(f's_cbranch_scc1 {Ls}')
        for l in lines: self.e(l)
        self.e(f's_branch {Le}')
        self.label(Ls)
        for l in lines: self.e(l + ' sc1')
        self.label(Le)
    def poll(self, voff, vexp, rsrc=WS, width=1, nonzero=False):
        e = self.e; P = V_P0
        L = self.newlabel('L_poll'); Ld = L + '_d'
        e(f's_mov_b32 s{S_CNT}, 0')
        self.label(L)
        ins = {1: 'dword', 2: 'dwordx2', 4: 'dwordx4'}[width]
        e(f'buffer_load_{ins} {vr(P, width)}, v{voff}, {srd(rsrc)}, 0 offen sc1')
        e('s_waitcnt vmcnt(0)')
        if nonzero:
            e(f'v_cmp_ne_u32 vcc, 0, v{P}')
        elif width == 'never':
            pass
        else:
            n = width if not (width == 2 and getattr(self, '_xcc2', False)) else 1
            for i in range(n): e(f'v_subrev_u32 v{P+i}, {vexp}, v{P+i}' if not getattr(self, '_xcc2', False) else f'v_subrev_u32 v{P+2}, {vexp}, v{P}')
            if getattr(self, '_xcc2', False):
                e(f'v_cmp_gt_u32 vcc, 16, v{P+2}')
            else:
                if n >= 2: e(f'v_max_u32 v{P}, v{P}, v{P+1}')
                if n == 4:
                    e(f'v_max_u32 v{P+2}, v{P+2}, v{P+3}')
                    e(f'v_max_u32 v{P}, v{P}, v{P+2}')
                e(f'v_cmp_gt_u32 vcc, 16, v{P}')
        e(f's_add_u32 s{S_CNT}, s{S_CNT}, 1')
        e(f's_cmp_eq_u64 vcc, -1')
        e(f's_cbranch_scc1 {Ld}')
        e(f's_cmp_lt_u32 s{S_CNT}, 0x8000')
        e(f's_cbranch_scc1 {L}')
        self.label(Ld)
    def post_pflag(self, force_sc1=False):
        e = self.e
        e(f'v_mov_b32 v{V_P0+4}, s{S_PH}')
        e(f'v_mov_b32 v{V_P0+5}, s{S_XCC}')
        e(f's_lshl_b32 s{S_CNT}, s{S_G}, 5')
        e(f's_add_u32 s{S_CNT}, s{S_CNT}, s{S_J}')
        e(f's_lshl_b32 s{S_CNT}, s{S_CNT}, 7')
        e(f's_add_u32 s{S_CNT}, s{S_CNT}, {PFLG}')
        e(f'v_mov_b32 v{V_P0+6}, s{S_CNT}')
        e('s_mov_b64 exec, 1')
        st = f'buffer_store_dwordx2 v[{V_P0+4}:{V_P0+5}], v{V_P0+6}, {srd(WS)}, 0 offen'
        if force_sc1: e(st + ' sc1')
        else: self.hstores([st])
        e('s_mov_b64 exec, -1')
    def poll_pgroup(self, with_xcc=False):
        e = self.e
        e(f'v_and_b32 v{V_P0+6}, 31, v{V_LANE}')
        e(f'v_lshlrev_b32 v{V_P0+6}, 7, v{V_P0+6}')
        e(f's_lshl_b32 s{S_T}, s{S_G}, 12')
        e(f's_add_u32 s{S_T}, s{S_T}, {PFLG}')
        e(f'v_add_u32 v{V_P0+6}, s{S_T}, v{V_P0+6}')
        self._xcc2 = with_xcc
        self.poll(V_P0+6, f's{S_PH}', width=2 if with_xcc else 1)
        self._xcc2 = False
    def post_wflag(self):
        e = self.e
        e('s_waitcnt vmcnt(0)')
        e(f'v_mov_b32 v{V_P0+4}, s{S_PH}')
        e(f'v_mov_b32 v{V_P0+5}, s{S_FO}')
        e('s_mov_b64 exec, 1')
        self.hstores([f'buffer_store_byte v{V_P0+4}, v{V_P0+5}, {srd(WS)}, 0 offen'])
        e('s_mov_b64 exec, -1')
        e(f's_add_u32 s{S_PH}, s{S_PH}, 1')
    def wait_wflags(self, ndw, jbase_sreg, shift_sreg, mask, phase):
        e = self.e
        P = V_P0
        e(f's_lshl_b32 s{S_T}, s{jbase_sreg}, 2')
        e(f's_add_u32 s{S_T}, s{S_T}, s{S_FL}')
        e(f'v_and_b32 v{P+6}, {ndw-1}, v{V_LANE}')
        e(f'v_lshlrev_b32 v{P+6}, 2, v{P+6}')
        e(f'v_add_u32 v{P+6}, s{S_T}, v{P+6}')
        if isinstance(phase, int):
            e(f's_mov_b32 s{S_T}, {((0x80 - phase) * 0x01010101) & 0xffffffff}')
        else:
            e(f's_sub_u32 s{S_T}, 0x80, s{phase}')
            e(f's_mul_i32 s{S_T}, s{S_T}, 0x01010101')
        if shift_sreg is None:
            e(f's_mov_b32 s{S_T+1}, {0x80808080 & mask}')
        else:
            e(f's_lshl_b32 s{S_T+1}, {0x80808080 & mask}, s{shift_sreg}')
        L = self.newlabel('L_sp'); Ld = L + '_d'
        e(f's_mov_b32 s{S_CNT}, 0')
        self.label(L)
        e(f'buffer_load_dword v{P}, v{P+6}, {srd(WS)}, 0 offen sc1')
        e('s_waitcnt vmcnt(0)')
        e(f'v_add_u32 v{P}, s{S_T}, v{P}')
        e(f'v_and_b32 v{P}, s{S_T+1}, v{P}')
        e(f'v_cmp_eq_u32 vcc, s{S_T+1}, v{P}')
        e(f's_add_u32 s{S_CNT}, s{S_CNT}, 1')
        e(f's_cmp_eq_u64 vcc, -1')
        e(f's_cbranch_scc1 {Ld}')
        e(f's_cmp_lt_u32 s{S_CNT}, 0x8000')
        e(f's_cbranch_scc1 {L}')
        self.label(Ld)
    def sync4(self, addr_vreg, target_sreg, tmp_v):
        e = self.e
        e(f'v_mov_b32 v{tmp_v}, 1')
        e(f's_add_u32 s{target_sreg}, s{target_sreg}, 4')
        e('s_waitcnt lgkmcnt(0)')
        e('s_mov_b64 exec, 1')
        e(f'ds_add_u32 v{addr_vreg}, v{tmp_v}')
        e('s_mov_b64 exec, -1')
        L = self.newlabel('L_s4'); Ld = L + '_d'
        e(f's_mov_b32 s{S_CNT}, 0')
        self.label(L)
        e(f'ds_read_b32 v{tmp_v}, v{addr_vreg}')
        e('s_waitcnt lgkmcnt(0)')
        e(f'v_readfirstlane_b32 s{S_T+9}, v{tmp_v}')
        e(f's_add_u32 s{S_CNT}, s{S_CNT}, 1')
        e(f's_cmp_ge_u32 s{S_T+9}, s{target_sreg}')
        e(f's_cbranch_scc1 {Ld}')
        e(f's_cmp_lt_u32 s{S_CNT}, 0x100000')
        e(f's_cbranch_scc1 {L}')
        self.label(Ld)
    def maybe_stop(self, name):
        if self.stop == name:
            self.e('s_waitcnt vmcnt(0) lgkmcnt(0)')
            self.e('s_branch L_fin')
            return True
        return False

    def prologue(self):
        e = self.e
        e('s_cmp_ge_u32 s2, 256')
        e('s_cbranch_scc1 L_end')
        if self.stamps: e('s_memrealtime s[100:101]')
        e(f's_load_dwordx2 s[{K}:{K+1}], s[0:1], 8')
        e(f's_load_dwordx2 s[{V}:{V+1}], s[0:1], 16')
        e(f'v_lshrrev_b32 v2, 6, v0')
        e(f's_and_b32 s{S_G}, s2, 7')
        e(f's_lshr_b32 s{S_J}, s2, 3')
        e(f'v_readfirstlane_b32 s{S_W}, v2')
        e(f'v_mov_b32 v{V_TID}, v0')
        e(f'v_lshrrev_b32 v2, 3, v0')
        e(f'v_and_b32 v3, 7, v0')
        e(f's_lshl_b32 s{S_T}, s{S_J}, 6')
        e(f'v_add_u32 v4, s{S_T}, v2')
        e(f'v_lshlrev_b32 v4, 10, v4')
        e(f'v_lshl_add_u32 v4, v3, 4, v4')
        e(f's_lshl_b32 s{S_T+1}, s{S_G}, 7')
        e(f'v_add_u32 v4, s{S_T+1}, v4')
        e(f'v_subrev_u32 v5, 3072, v4')
        e(f'v_add_u32 v6, {61*1024}, v4')
        e(f's_mov_b32 s3, 0x20000')
        for r in (K, V):
            e(f's_mov_b32 s{r+2}, 2097152'); e(f's_mov_b32 s{r+3}, s3')
        e(f'v_mov_b32 v7, -1')
        e(f'v_cmp_gt_u32 vcc, 24, v0')
        e(f'v_and_b32 v{V_LANE}, 63, v0')
        e('s_waitcnt lgkmcnt(0)')
        e(f'v_cndmask_b32 v6, v7, v6, vcc')
        e(f'buffer_load_dwordx4 v[8:11], v5, {srd(K)}, 0 offen')
        e(f'buffer_load_dwordx4 v[12:15], v4, {srd(V)}, 0 offen')
        e(f'buffer_load_dwordx4 v[16:19], v6, {srd(K)}, 0 offen')
        self.stamp('kv loads issued')
        for r, off in [(SK, 24), (WS, 96), (HK, 32), (DBG, 88), (S_DP, 40), (Q, 0), (W1, 56), (W3, 64), (W2, 72), (OUT, 80)]:
            e(f's_load_dwordx2 s[{r}:{r+1}], s[0:1], {off}')
        e(f's_memrealtime s[{S_T+4}:{S_T+5}]')
        for r, sz in [(SK, 4096), (WS, WSSZ), (HK, 2097152), (Q, 2097152), (DBG, 256), (W1, 1409024), (W3, 1409024), (W2, 1409024), (OUT, 2097152)]:
            e(f's_mov_b32 s{r+2}, {sz}')
            e(f's_mov_b32 s{r+3}, s3')
        e(f'v_lshlrev_b32 v{V_L16}, 4, v{V_LANE}')
        e(f's_getreg_b32 s{S_XCC}, hwreg(HW_REG_XCC_ID)')
        e(f's_and_b32 s{S_XCC}, s{S_XCC}, 15')
        e(f's_mov_b32 s{S_MODE}, 0')
        e(f's_mul_i32 s{S_SJ}, s{S_J}, 3')
        e(f's_min_u32 s{S_SJ}, s{S_SJ}, 83')
        e(f'v_mul_u32_u24 v20, {KVP}, v2')
        e(f'v_lshl_add_u32 v20, v3, 4, v20')
        e(f'v_add_u32 v20, {KVS}, v20')
        e(f's_lshl_b32 s{S_T+2}, s{S_W}, 4')
        e(f'v_lshrrev_b32 v21, 4, v{V_LANE}')
        e(f'v_lshlrev_b32 v21, 2, v21')
        e(f'v_add_u32 v21, s{S_T+2}, v21')
        e(f'v_and_b32 v22, 15, v{V_LANE}')
        e(f'v_lshlrev_b32 v22, 2, v22')
        e(f'v_mul_u32_u24 v23, {KVP}, v22')
        e(f'v_add_u32 v23, v23, v21')
        e(f'v_add_u32 v23, {KVS}, v23')
        e(f'v_add_u32 v21, s{S_T+1}, v21')
        e(f'v_add_u32 v22, s{S_T}, v22')
        e('s_waitcnt lgkmcnt(0)')
        e(f'v_lshlrev_b32 v24, 2, v21')
        e(f'buffer_load_dwordx4 v[28:31], v24, {srd(SK)}, 0 offen')
        L = self.newlabel('L_z')
        e(f's_cmp_lg_u32 s{S_W}, 7')
        e(f's_cbranch_scc1 {L}')
        e(f's_cmp_lg_u32 s{S_J}, 0')
        e(f's_cbranch_scc1 {L}')
        e(f's_lshl_b32 s{S_T+4}, s{S_T+4}, 4')
        e(f's_or_b32 s{S_T+4}, s{S_T+4}, 15')
        e(f'v_mov_b32 v25, s{S_T+4}')
        e(f's_lshl_b32 s{S_T+5}, s{S_G}, 5')
        e(f'v_mov_b32 v26, s{S_T+5}')
        e('s_mov_b64 exec, 1')
        e(f'buffer_store_dword v25, v26, {srd(DBG)}, 0 offen sc1')
        e('s_mov_b64 exec, -1')
        self.label(L)
        L = self.newlabel('L_zf')
        e(f's_cmp_lg_u32 s{S_W}, 6')
        e(f's_cbranch_scc1 {L}')
        e(f's_cmp_lg_u32 s{S_J}, 0')
        e(f's_cbranch_scc1 {L}')
        e(f'v_mov_b32 v25, 0')
        e(f'v_lshlrev_b32 v26, 2, v{V_LANE}')
        e(f's_lshl_b32 s{S_T+5}, s{S_G}, 8')
        e(f'buffer_store_dword v25, v26, {srd(WS)}, s{S_T+5} offen sc1')
        self.label(L)
        e(f's_lshl_b32 s{S_T+2}, s{S_G}, 18')
        e(f's_lshl_b32 s{S_T+3}, s{S_J}, 13')
        e(f's_add_u32 s{S_T+2}, s{S_T+2}, s{S_T+3}')
        e(f'v_lshrrev_b32 v25, 8, v{V_TID}')
        e(f'v_and_b32 v26, 255, v{V_TID}')
        e(f'v_lshlrev_b32 v27, 12, v25')
        e(f'v_lshl_add_u32 v27, v26, 4, v27')
        e(f'buffer_load_dwordx4 v[32:35], v27, {srd(HK)}, s{S_T+2} offen')
        e(f'buffer_load_dwordx4 v[36:39], v27, {srd(HK)}, s{S_T+2} offen offset:16')
        e(f'v_lshlrev_b32 v40, 12, v{V_LANE}')
        e(f'v_and_b32 v40, 0x1000, v40')
        e(f'buffer_load_dwordx4 v[44:47], v40, {srd(HK)}, s{S_T+2} offen')
        e(f'v_mul_u32_u24 v25, {HC_CH}, v25')
        e(f'v_lshl_add_u32 v25, v26, 4, v25')
        e(f'v_add_u32 v25, {HC+32}, v25')
        e(f's_lshl_b32 s{S_T+2}, s{S_G}, 7')
        e(f's_lshl_b32 s{S_T+3}, s{S_J}, 2')
        e(f's_add_u32 s{S_T+2}, s{S_T+2}, s{S_T+3}')
        e(f's_load_dword s{S_D0}, s[{S_DP}:{S_DP+1}], s{S_T+2}')
        L = self.newlabel('L_zc')
        e(f's_cmp_lg_u32 s{S_W}, 0')
        e(f's_cbranch_scc1 {L}')
        e(f'v_mov_b32 v50, 0')
        e(f'v_mov_b32 v51, {CNT1}')
        for o in (0, CNT2-CNT1, GDONE-CNT1, WRDY-CNT1, YCNT-CNT1, YCNT+16-CNT1, RCNT-CNT1, RCNT+16-CNT1, FDONE-CNT1):
            e(f'ds_write_b32 v51, v50 offset:{o}')
        self.label(L)
        e(f's_lshl_b32 s{S_T+2}, s{S_G}, 5')
        e(f'v_mov_b32 v48, s{S_T+2}')
        e(f'buffer_load_dword v49, v48, {srd(DBG)}, 0 offen sc1')
    def write_copies(self, E, addr, tmp):
        e = self.e
        OA, OB, EB = tmp, tmp + 4, tmp + 8
        for i in range(4):
            e(f'v_alignbit_b32 v{OA+i}, v{E+i+1}, v{E+i}, 16')
            e(f'v_alignbit_b32 v{OB+i}, v{E+i+2}, v{E+i+1}, 16')
            e(f'v_mov_b32 v{EB+i}, v{E+i+1}')
        src = {0: E, 1: OA, 2: EB, 3: OB}
        for c_ in range(4):
            e(f'ds_write_b128 v{addr}, {vr(src[c_], 4)} offset:{c_*HC_CP}')
    def p1a(self):
        e = self.e
        self.c('==== P1a: kv = shiftconv(k) * v  -> KVT (reversed time)')
        e('s_waitcnt vmcnt(5)')
        self.stamp('kv loaded')
        for i in range(4): e(f'ds_write_b32 v20, v{8+i} offset:{4*i}')
        for i in range(4): e(f'ds_write_b32 v20, v{12+i} offset:{KVS_V - KVS + 4*i}')
        e(f'v_cmp_gt_u32 vcc, 24, v{V_TID}')
        e('s_and_saveexec_b64 s[56:57], vcc')
        L = self.newlabel('L_k2')
        e(f's_cbranch_execz {L}')
        for i in range(4): e(f'ds_write_b32 v20, v{16+i} offset:{64*KVP + 4*i}')
        self.label(L)
        e('s_mov_b64 exec, s[56:57]')
        e('s_waitcnt lgkmcnt(0)')
        e('s_barrier')
        for i in range(7): e(f'ds_read_b32 v{8+i}, v23 offset:{i*KVP}')
        for i in range(4): e(f'ds_read_b32 v{16+i}, v23 offset:{KVS_V - KVS + i*KVP}')
        e('s_waitcnt vmcnt(4)')
        T = 52
        for d in range(4):
            e(f'v_lshlrev_b32 v{T+2*d}, 16, v{28+d}')
            e(f'v_and_b32 v{T+2*d+1}, 0xffff0000, v{28+d}')
        KL, KH = 60, 68
        e('s_waitcnt lgkmcnt(4)')
        for i in range(7):
            e(f'v_lshlrev_b32 v{KL+i}, 16, v{8+i}')
            e(f'v_and_b32 v{KH+i}, 0xffff0000, v{8+i}')
        R = 76
        for ch, KK in ((0, KL), (1, KH)):
            for t in range(4):
                e(f'v_mul_f32 v{R+4*ch+t}, v{KK+t}, v{T+4*ch+3}')
        for ip in range(1, 4):
            for ch, KK in ((0, KL), (1, KH)):
                for t in range(4):
                    e(f'v_fmac_f32 v{R+4*ch+t}, v{KK+t+ip}, v{T+4*ch+3-ip}')
        e('s_waitcnt lgkmcnt(0)')
        for t in range(4):
            e(f'v_lshlrev_b32 v{84+2*t}, 16, v{16+t}')
            e(f'v_and_b32 v{85+2*t}, 0xffff0000, v{16+t}')
        for t in range(4):
            e(f'v_mul_f32 v{R+t}, v{R+t}, v{84+2*t}')
            e(f'v_mul_f32 v{R+4+t}, v{R+4+t}, v{85+2*t}')
        e(f'v_lshlrev_b32 v96, 11, v21')
        e(f'v_sub_u32 v97, 2044, v22')
        e(f'v_lshl_add_u32 v96, v97, 1, v96')
        e(f'v_add_u32 v96, {KVT}, v96')
        e(f'v_add_u32 v97, 4096, v96')
        e(f'v_cvt_pk_bf16_f32 v92, v{R+3}, v{R+2}')
        e(f'v_cvt_pk_bf16_f32 v93, v{R+1}, v{R+0}')
        e(f'v_cvt_pk_bf16_f32 v94, v{R+7}, v{R+6}')
        e(f'v_cvt_pk_bf16_f32 v95, v{R+5}, v{R+4}')
        e(f'buffer_store_dwordx2 v[92:93], v96, {srd(WS)}, 0 offen sc1')
        e(f'buffer_store_dwordx2 v[94:95], v97, {srd(WS)}, 0 offen sc1')
        self.stamp('kv stores issued')
        e('s_waitcnt vmcnt(2)')
        self.write_copies(32, 25, 100)
        L = self.newlabel('L_pad')
        e(f's_cmp_lg_u32 s{S_W}, 7')
        e(f's_cbranch_scc1 {L}')
        for i in range(4): e(f'v_mov_b32 v{40+i}, 0')
        e(f'v_and_b32 v26, 1, v{V_LANE}')
        e(f'v_mul_u32_u24 v26, {HC_CH}, v26')
        e(f'v_add_u32 v26, {HC+16}, v26')
        e('s_mov_b64 exec, 3')
        self.write_copies(40, 26, 100)
        for i in range(4): e(f'v_mov_b32 v{44+i}, 0')
        e(f'v_subrev_u32 v26, 16, v26')
        for s_ in range(4):
            e(f'ds_write_b128 v26, v[44:47] offset:{s_*HC_CP}')
        e('s_mov_b64 exec, -1')
        self.label(L)
        L = self.newlabel('L_xz')
        e(f's_cmp_lg_u32 s{S_W}, 6')
        e(f's_cbranch_scc1 {L}')
        e(f'v_lshrrev_b32 v26, 5, v{V_LANE}')
        e(f'v_mul_u32_u24 v26, {XR_CH}, v26')
        e(f'v_and_b32 v27, 31, v{V_LANE}')
        e(f'v_lshl_add_u32 v26, v27, 4, v26')
        e(f'v_add_u32 v26, {XR+4096}, v26')
        for i in range(4): e(f'v_mov_b32 v{40+i}, 0')
        e(f'ds_write_b128 v26, v[40:43]')
        self.label(L)
    def fmt_load(self, idreg, D0, D1, A):
        e = self.e
        Lw2 = self.newlabel('L_f2'); Le = Lw2 + '_e'
        e(f's_cmp_ge_u32 s{idreg}, 1376')
        e(f's_cbranch_scc1 {Lw2}')
        e(f's_mul_hi_u32 s{S_T}, s{idreg}, 0x5f417d1')
        e(f's_mul_i32 s{S_T+1}, s{S_T}, 43')
        e(f's_sub_u32 s{S_T+1}, s{idreg}, s{S_T+1}')
        e(f's_mul_i32 s{S_T+2}, s{S_T}, {16*2752}')
        e(f's_lshl_b32 s{S_T+3}, s{S_T+1}, 6')
        e(f's_add_u32 s{S_T+2}, s{S_T+2}, s{S_T+3}')
        e(f'v_lshrrev_b32 v{A}, 2, v{V_LANE}')
        e(f'v_and_b32 v{A+1}, 3, v{V_LANE}')
        e(f'v_mul_u32_u24 v{A+2}, 2752, v{A}')
        e(f'v_lshl_add_u32 v{A+2}, v{A+1}, 4, v{A+2}')
        e(f'buffer_load_dwordx4 v[{D0}:{D0+3}], v{A+2}, {srd(W1)}, s{S_T+2} offen')
        e(f'buffer_load_dwordx4 v[{D1}:{D1+3}], v{A+2}, {srd(W3)}, s{S_T+2} offen')
        e(f'v_lshlrev_b32 v{A}, 7, v{A}')
        e(f'v_lshl_add_u32 v{A}, v{A+1}, 4, v{A}')
        e(f's_lshl_b32 s{S_T+1}, s{S_T+1}, 6')
        e(f's_add_u32 s{S_T+1}, s{S_T+1}, s{S_T}')
        e(f's_lshl_b32 s{S_T+1}, s{S_T+1}, 10')
        e(f's_add_u32 s{idreg}, s{S_T+1}, {W13F}')
        e(f's_mov_b32 s{idreg+1}, {32*1024}')
        e(f's_mov_b32 s{idreg+2}, 64')
        e(f'v_lshrrev_b32 v{A+1}, 5, v{V_LANE}')
        e(f'v_lshlrev_b32 v{A+1}, 3, v{A+1}')
        e(f'v_bfe_u32 v{A+2}, v{V_LANE}, 2, 2')
        e(f'v_add_u32 v{A+1}, v{A+1}, v{A+2}')
        e(f'v_lshlrev_b32 v{A+1}, 7, v{A+1}')
        e(f'v_bfe_u32 v{A+2}, v{V_LANE}, 4, 1')
        e(f'v_lshl_add_u32 v{A+1}, v{A+2}, 6, v{A+1}')
        e(f's_mov_b32 s{idreg+3}, 0x00200200')
        e(f's_branch {Le}')
        self.label(Lw2)
        e(f's_sub_u32 s{S_T}, s{idreg}, 1376')
        e(f's_lshr_b32 s{S_T+1}, s{S_T}, 3')
        e(f's_and_b32 s{S_T}, s{S_T}, 7')
        e(f's_lshl_b32 s{S_T+2}, s{S_T+1}, 14')
        e(f's_lshl_b32 s{S_T+3}, s{S_T}, 7')
        e(f's_add_u32 s{S_T+2}, s{S_T+2}, s{S_T+3}')
        e(f's_add_u32 s{S_T+3}, s{S_T+2}, 8192')
        e(f'v_lshrrev_b32 v{A}, 3, v{V_LANE}')
        e(f'v_and_b32 v{A+1}, 7, v{V_LANE}')
        e(f'v_lshlrev_b32 v{A+2}, 10, v{A}')
        e(f'v_lshl_add_u32 v{A+2}, v{A+1}, 4, v{A+2}')
        e(f'buffer_load_dwordx4 v[{D0}:{D0+3}], v{A+2}, {srd(W2)}, s{S_T+2} offen')
        e(f'buffer_load_dwordx4 v[{D1}:{D1+3}], v{A+2}, {srd(W2)}, s{S_T+3} offen')
        e(f'v_lshlrev_b32 v{A}, 7, v{A}')
        e(f'v_lshl_add_u32 v{A}, v{A+1}, 4, v{A}')
        e(f's_mul_i32 s{S_T}, s{S_T}, {2*86}')
        e(f's_add_u32 s{S_T}, s{S_T}, s{S_T+1}')
        e(f's_lshl_b32 s{S_T}, s{S_T}, 10')
        e(f's_add_u32 s{idreg}, s{S_T}, {W2F}')
        e(f's_mov_b32 s{idreg+1}, {86*1024}')
        e(f's_mov_b32 s{idreg+2}, 1024')
        e(f'v_lshrrev_b32 v{A+1}, 5, v{V_LANE}')
        e(f'v_lshlrev_b32 v{A+1}, 2, v{A+1}')
        e(f'v_bfe_u32 v{A+2}, v{V_LANE}, 2, 2')
        e(f'v_add_u32 v{A+1}, v{A+1}, v{A+2}')
        e(f'v_lshlrev_b32 v{A+1}, 7, v{A+1}')
        e(f'v_bfe_u32 v{A+2}, v{V_LANE}, 4, 1')
        e(f'v_lshl_add_u32 v{A+1}, v{A+2}, 5, v{A+1}')
        e(f's_mov_b32 s{idreg+3}, 0x00400400')
        self.label(Le)
        e(f'v_and_b32 v{A+2}, 3, v{V_LANE}')
        e(f'v_lshl_add_u32 v{A+1}, v{A+2}, 3, v{A+1}')
    def fmt_store(self, idreg, D0, D1, A, region):
        e = self.e
        e(f's_and_b32 s{S_T}, s{S_W}, 3')
        e(f's_lshl_b32 s{S_T}, s{S_T}, 11')
        e(f's_add_u32 s{S_T}, s{S_T}, {FMT}')
        e(f'v_add_u32 v{A}, s{S_T}, v{A}')
        e(f'v_add_u32 v{A+1}, s{S_T}, v{A+1}')
        e(f'v_add_u32 v{A+2}, s{idreg+2}, v{A}')
        e(f'ds_write_b128 v{A}, v[{D0}:{D0+3}]')
        e(f'ds_write_b128 v{A+2}, v[{D1}:{D1+3}]')
        e(f's_and_b32 s{S_T}, s{idreg+3}, 0xffff')
        e(f's_lshr_b32 s{S_T+1}, s{idreg+3}, 16')
        e(f'v_add_u32 v{A+2}, s{S_T}, v{A+1}')
        e(f'v_add_u32 v{A+3}, s{S_T+1}, v{A+1}')
        e(f'v_add_u32 v{A}, s{S_T}, v{A+3}')
        e('s_waitcnt lgkmcnt(0)')
        e(f'ds_read_b64_tr_b16 v[{D0}:{D0+1}], v{A+1}')
        e(f'ds_read_b64_tr_b16 v[{D0+2}:{D0+3}], v{A+2}')
        e(f'ds_read_b64_tr_b16 v[{D1}:{D1+1}], v{A+3}')
        e(f'ds_read_b64_tr_b16 v[{D1+2}:{D1+3}], v{A}')
        e(f's_add_u32 s{S_T}, s{idreg}, s{idreg+1}')
        e('s_waitcnt lgkmcnt(0)')
        e(f'buffer_store_dwordx4 v[{D0}:{D0+3}], v{V_L16}, {srd(WS)}, s{idreg} offen sc1')
        e(f'buffer_store_dwordx4 v[{D1}:{D1+3}], v{V_L16}, {srd(WS)}, s{S_T} offen sc1')
    def touches(self):
        e = self.e
        L5 = self.newlabel('L_t'); L6 = L5 + '_6'; Lend = L5 + '_e'; Lno = L5 + '_n'
        e(f's_cmp_eq_u32 s{S_W}, 5'); e(f's_cbranch_scc1 {L5}')
        e(f's_cmp_eq_u32 s{S_W}, 6'); e(f's_cbranch_scc1 {L6}')
        e(f's_cmp_lg_u32 s{S_W}, 4'); e(f's_cbranch_scc1 {Lno}')
        e(f's_lshl_b32 s{S_T}, s{S_G}, 3'); e(f's_lshr_b32 s{S_T+1}, s{S_J}, 3'); e(f's_add_u32 s{S_T}, s{S_T}, s{S_T+1}')
        e(f's_and_b32 s{S_T+1}, s{S_J}, 1'); e(f's_lshl_b32 s{S_T+1}, s{S_T+1}, 2'); e(f's_add_u32 s{S_T}, s{S_T}, s{S_T+1}')
        e(f's_lshl_b32 s{S_T}, s{S_T}, 15'); e(f's_and_b32 s{S_T+1}, s{S_J}, 7'); e(f's_lshl_b32 s{S_T+1}, s{S_T+1}, 6')
        e(f's_add_u32 s{S_T}, s{S_T}, s{S_T+1}'); e(f's_add_u32 s{S_T}, s{S_T}, {N1}')
        e(f'v_lshlrev_b32 v150, 9, v{V_LANE}')
        e(f's_branch {Lend}')
        self.label(L5)
        e(f's_lshr_b32 s{S_T}, s{S_J}, 4'); e(f's_lshl_b32 s{S_T}, s{S_T}, 6'); e(f's_lshl_b32 s{S_T+1}, s{S_G}, 8')
        e(f's_add_u32 s{S_T}, s{S_T}, s{S_T+1}')
        e(f's_and_b32 s{S_T+1}, s{S_J}, 1'); e(f's_lshl_b32 s{S_T+1}, s{S_T+1}, 7'); e(f's_add_u32 s{S_T}, s{S_T}, s{S_T+1}')
        e(f's_lshl_b32 s{S_T}, s{S_T}, 10')
        e(f's_and_b32 s{S_T+1}, s{S_J}, 15'); e(f's_lshl_b32 s{S_T+1}, s{S_T+1}, 6'); e(f's_add_u32 s{S_T}, s{S_T}, s{S_T+1}')
        e(f's_add_u32 s{S_T}, s{S_T}, {O1}')
        e(f'v_lshlrev_b32 v150, 10, v{V_LANE}')
        e(f's_branch {Lend}')
        self.label(L6)
        e(f's_lshl_b32 s{S_T}, s{S_G}, 5'); e(f's_add_u32 s{S_T}, s{S_T}, s{S_J}'); e(f's_lshl_b32 s{S_T}, s{S_T}, 8')
        e(f'v_and_b32 v150, 1, v{V_LANE}'); e(f'v_lshlrev_b32 v150, 7, v150')
        self.label(Lend)
        e(f'buffer_load_dword v151, v150, {srd(WS)}, s{S_T} offen sc1')
        self.label(Lno)
    def sync1(self):
        e = self.e
        self.c('---- sync1 : group nonce, arrive with xcc id, detect single-XCD groups')
        L0 = self.newlabel('L_n')
        e('s_waitcnt vmcnt(0)')
        self.stamp('own drained')
        e(f's_cmp_lg_u32 s{S_W}, 0')
        e(f's_cbranch_scc1 {L0}')
        e(f'v_readfirstlane_b32 s{S_PH}, v49')
        e(f's_cmp_lg_u32 s{S_PH}, 0')
        e(f's_cbranch_scc1 {L0}_ok')
        self.poll(48, None, rsrc=DBG, nonzero=True)
        e(f'v_readfirstlane_b32 s{S_PH}, v{V_P0}')
        self.label(L0 + '_ok')
        e(f's_and_b32 s{S_PH}, s{S_PH}, 0xfffffff0')
        e(f's_or_b32 s{S_PH}, s{S_PH}, 1')
        self.label(L0)
        e('s_waitcnt lgkmcnt(0)')
        e('s_barrier')
        self.stamp('p1a drained')
        e(f's_mov_b32 s{S_C1+59}, 0')
        e(f's_cmp_ge_u32 s{S_W}, 4')
        e(f's_cbranch_scc1 L_helper')
        L = self.newlabel('L_s1'); L2 = L + '_e'
        e(f's_cmp_lg_u32 s{S_W}, 0')
        e(f's_cbranch_scc1 {L}')
        self.post_pflag(force_sc1=True)
        self.label(L)
        e(f'v_and_b32 v2, 15, v{V_LANE}')
        e(f'v_add_u32 v2, 1, v2')
        e(f'v_and_b32 v3, 3, v2')
        e(f'v_sub_u32 v2, v2, v3')
        e(f'v_mul_u32_u24 v3, {HC_CP}, v3')
        e(f'v_lshrrev_b32 v4, 4, v{V_LANE}')
        e(f'v_lshlrev_b32 v2, 1, v2')
        e(f'v_add_u32 v3, v3, v2')
        e(f'v_lshlrev_b32 v2, 4, v4')
        e(f'v_sub_u32 v3, v3, v2')
        e(f's_lshr_b32 s{S_T}, s{S_W}, 1')
        e(f's_mul_i32 s{S_T+2}, s{S_T}, {HC_CH}')
        e(f's_and_b32 s{S_T+1}, s{S_W}, 1')
        e(f's_lshl_b32 s{S_T+1}, s{S_T+1}, 6')
        e(f's_add_u32 s{S_T+2}, s{S_T+2}, s{S_T+1}')
        e(f's_add_u32 s{S_T+2}, s{S_T+2}, {HC + 32 + 16}')
        e(f'v_add_u32 v3, s{S_T+2}, v3')
        e(f's_mul_i32 s{S_T}, s{S_T}, {XR_CH}')
        e(f's_add_u32 s{S_T}, s{S_T}, s{S_T+1}')
        e(f's_add_u32 s{S_T}, s{S_T}, {XR + 4112 + 384 - 128*31}')
        e(f'v_and_b32 v5, 15, v{V_LANE}')
        e(f'v_lshlrev_b32 v5, 5, v5')
        e(f'v_lshl_add_u32 v5, v4, 4, v5')
        e(f'v_sub_u32 v5, s{S_T}, v5')
        e(f'v_lshlrev_b32 v7, 4, v{V_TID}')
        e(f'v_add_u32 v6, {XR}, v7')
        e(f's_lshl_b32 s{S_T}, s{S_G}, 18')
        e(f's_lshl_b32 s{S_T+1}, s{S_J}, 13')
        e(f's_add_u32 s{S_T}, s{S_T}, s{S_T+1}')
        e(f's_add_u32 s{S_T+5}, s{S_T}, {KVT}')
        e(f'v_mov_b32 v10, {CNT1}')
        e(f's_cmp_lg_u32 s{S_W}, 0')
        e(f's_cbranch_scc1 {L2}')
        self.poll_pgroup(with_xcc=True)
        e(f'v_cmp_eq_u32 vcc, s{S_XCC}, v{V_P0+1}')
        e(f's_cmp_eq_u64 vcc, -1')
        e(f's_cselect_b32 s{S_MODE}, 1, 0')
        e(f'v_mov_b32 v{V_P0}, s{S_MODE}')
        e(f'v_mov_b32 v{V_P0+1}, s{S_PH}')
        e(f'v_mov_b32 v{V_P0+2}, {MBX}')
        e(f'ds_write_b64 v{V_P0+2}, v[{V_P0}:{V_P0+1}]')
        self.label(L2)
        self.sync4(10, 90, 11)
    def p1b(self):
        e = self.e
        self.c('==== P1b: long conv (waves 0..3)')
        e(f'buffer_load_dwordx4 v[12:15], v7, {srd(WS)}, s{S_T+5} offen sc1')
        e(f's_add_u32 s{S_T+5}, s{S_T+5}, 4096')
        e(f'buffer_load_dwordx4 v[16:19], v7, {srd(WS)}, s{S_T+5} offen sc1')
        AR, BF, AC = 192, 16, 208
        def aread(a_):
            r = AR + 4*(a_ % 4)
            e(f'ds_read_b64 v[{r}:{r+1}], v3 offset:{128*a_}')
            e(f'ds_read_b64 v[{r+2}:{r+3}], v3 offset:{128*a_ + 8}')
        aread(0); aread(1)
        e('s_waitcnt vmcnt(1)')
        e(f'ds_write_b128 v6, v[12:15]')
        e('s_waitcnt vmcnt(0)')
        e(f'ds_write_b128 v6, v[16:19] offset:{XR_CH}')
        self.sync4(10, 90, 11)
        self.stamp('xr filled')
        for bi in range(32):
            e(f'ds_read_b128 v[{BF+4*bi}:{BF+3+4*bi}], v5 offset:{128*(31-bi)}')
        self.qload()
        e('s_waitcnt lgkmcnt(0)')
        e('s_setprio 2')
        for a_ in range(32):
            if a_ + 2 < 32: aread(a_ + 2)
            if a_ >= 1: e(f's_waitcnt lgkmcnt({4 if a_ + 2 < 32 else (2 if a_ + 1 < 32 else 0)})')
            r = AR + 4*(a_ % 4)
            for i in range(a_ >> 2, 8):
                bi = 4*i - a_ + 3
                c = '0' if a_ == 0 else f'v[{AC+4*i}:{AC+3+4*i}]'
                e(f'v_mfma_f32_16x16x32_bf16 v[{AC+4*i}:{AC+3+4*i}], v[{r}:{r+3}], v[{BF+4*bi}:{BF+3+4*bi}], {c}')
        e('s_setprio 0')
        self.stamp('mfma issued')
        e(f'v_and_b32 v8, 15, v{V_LANE}')
        e(f'v_lshlrev_b32 v8, 4, v8')
        e(f'v_lshrrev_b32 v9, 4, v{V_LANE}')
        e(f'v_lshl_add_u32 v8, v9, 2, v8')
        e(f's_lshl_b32 s{S_T}, s{S_W}, 9')
        e(f'v_add_u32 v8, s{S_T}, v8')
        e(f'v_sub_u32 v9, 2044, v8')
        e(f'v_lshlrev_b32 v9, 1, v9')
        e(f'v_add_u32 v9, {XR - 512}, v9')
        for tl in range(2):
            for ch in range(2):
                e(f'ds_read_b64 v[{16+4*tl+2*ch}:{17+4*tl+2*ch}], v9 offset:{ch*XR_CH + (512 if tl == 0 else 0)}')
        e(f's_lshl_b32 s{S_T}, s{S_W}, 13')
        e(f'v_add_u32 v7, s{S_T}, v{V_L16}')
        self.sync4(10, 90, 11)
        for i in range(8):
            e(f'ds_write_b128 v7, v[{AC+4*i}:{AC+3+4*i}] offset:{RED + 1024*i}')
        e(f's_lshl_b32 s{S_T}, s{S_W}, 11')
        e(f'v_add_u32 v7, s{S_T}, v{V_L16}')
        e(f's_and_b32 s{S_D1}, s{S_D0}, 0xffff0000')
        e(f's_lshl_b32 s{S_D0}, s{S_D0}, 16')
        self.sync4(10, 90, 11)
        for tl in range(2):
            for ch in range(2):
                for p in range(2):
                    r = 32 + 16*tl + 8*ch + 4*p
                    e(f'ds_read_b128 v[{r}:{r+3}], v7 offset:{RED + (2*ch+p)*8192 + tl*1024}')
        for tl in range(2):
            for ch in range(2):
                k0 = 16 + 4*tl + 2*ch; d = 64 + 8*tl + 4*ch
                e(f'v_lshlrev_b32 v{d}, 16, v{k0}')
                e(f'v_and_b32 v{d+1}, 0xffff0000, v{k0}')
                e(f'v_lshlrev_b32 v{d+2}, 16, v{k0+1}')
                e(f'v_and_b32 v{d+3}, 0xffff0000, v{k0+1}')
        e(f's_lshl_b32 s{S_T}, s{S_G}, 5')
        e(f's_add_u32 s{S_T}, s{S_T}, s{S_J}')
        e(f's_lshl_b32 s{S_T}, s{S_T}, 13')
        e(f's_add_u32 s{S_T}, s{S_T}, {Y2}')
        e(f'v_lshlrev_b32 v8, 2, v8')
        e('s_waitcnt lgkmcnt(0)')
        for tl in range(2):
            for ch in range(2):
                r = 32 + 16*tl + 8*ch; d = 64 + 8*tl + 4*ch
                sD = S_D0 if ch == 0 else S_D1
                for t in range(4): e(f'v_add_f32 v{r+t}, v{r+t}, v{r+4+t}')
                for t in range(4): e(f'v_fmac_f32 v{r+t}, s{sD}, v{d+3-t}')
            for t in range(4):
                e(f'v_cvt_pk_bf16_f32 v{80+4*tl+t}, v{32+16*tl+t}, v{40+16*tl+t}')
        e(f'buffer_store_dwordx4 v[80:83], v8, {srd(WS)}, s{S_T} offen sc1')
        e(f'buffer_store_dwordx4 v[84:87], v8, {srd(WS)}, s{S_T} offen offset:1024 sc1')
        self.stamp('p1b end')
        e('s_branch L_gsync')
        self.label('L_helper')
        e(f's_lshl_b32 s16, s2, 2')
        e(f's_and_b32 s{S_T}, s{S_W}, 3')
        e(f's_add_u32 s16, s16, s{S_T}')
        e(f's_add_u32 s20, s16, 1024')
        e(f's_add_u32 s24, s16, 2048')
        if self.FSTART:
            self.lds_spin(CNT1, self.FSTART)
        self.fmt_load(16, 120, 124, 128)
        self.fmt_load(20, 132, 136, 140)
        Lc = self.newlabel('L_fc')
        e(f's_cmp_ge_u32 s2, 4')
        e(f's_cbranch_scc1 {Lc}')
        self.fmt_load(24, 160, 164, 168)
        self.label(Lc)
        self.qload()
        Ln = self.newlabel('L_hn')
        e(f'v_readfirstlane_b32 s{S_PH}, v49')
        e(f's_cmp_lg_u32 s{S_PH}, 0')
        e(f's_cbranch_scc1 {Ln}')
        self.poll(48, None, rsrc=DBG, nonzero=True)
        e(f'v_readfirstlane_b32 s{S_PH}, v{V_P0}')
        self.label(Ln)
        e(f's_and_b32 s{S_NONCE}, s{S_PH}, 0xfffffff0')
        e(f's_or_b32 s{S_PH}, s{S_NONCE}, 1')
        e('s_waitcnt vmcnt(0)')
        self.fmt_store(16, 120, 124, 128, 0)
        self.fmt_store(20, 132, 136, 140, 0)
        Lc = self.newlabel('L_fc')
        e(f's_cmp_ge_u32 s2, 4')
        e(f's_cbranch_scc1 {Lc}')
        self.fmt_store(24, 160, 164, 168, 0)
        self.label(Lc)
        e('s_waitcnt vmcnt(0)')
        e(f'v_mov_b32 v10, {CNT2}')
        e(f's_mov_b32 s{S_RC}, 0')
        self.sync4(10, S_RC, 11)
        self.stamp('fmt drained')
        La = self.newlabel('L_fa')
        e(f's_cmp_lg_u32 s{S_W}, 4')
        e(f's_cbranch_scc1 {La}')
        self.lds_spin(CNT1, 4)
        e(f'v_mov_b32 v{V_P0+2}, {MBX}')
        e(f'ds_read_b64 v[{V_P0}:{V_P0+1}], v{V_P0+2}')
        e('s_waitcnt lgkmcnt(0)')
        e(f'v_readfirstlane_b32 s{S_MODE}, v{V_P0}')
        self.chip_barrier(1, S_NONCE)
        e(f'v_mov_b32 v10, {FDONE}')
        e(f'v_mov_b32 v11, 1')
        e(f'ds_write_b32 v10, v11')
        e('s_waitcnt lgkmcnt(0)')
        self.label(La)
        self.lds_spin(FDONE, 1)
        self.stamp('fmt global')
        self.w13_dma_dense()
        e('s_waitcnt vmcnt(0)')
        e(f'v_mov_b32 v10, {WRDY}')
        e(f'v_mov_b32 v11, 1')
        e('s_mov_b64 exec, 1')
        e(f'ds_add_u32 v10, v11')
        e('s_mov_b64 exec, -1')
        self.stamp('helper done')
        self.lds_spin(GDONE, 1)
        e(f'v_mov_b32 v{V_P0+2}, {MBX}')
        e(f'ds_read_b64 v[{V_P0}:{V_P0+1}], v{V_P0+2}')
        e('s_waitcnt lgkmcnt(0)')
        e(f'v_readfirstlane_b32 s{S_MODE}, v{V_P0}')
        e('s_branch L_r1')
    def chip_barrier(self, k, nonce_sreg):
        e = self.e
        A = V_P0 + 6
        e(f's_or_b32 s{S_T+2}, s{nonce_sreg}, 1')
        e(f's_lshl_b32 s{S_T+3}, s{S_G}, 5')
        e(f's_add_u32 s{S_T+3}, s{S_T+3}, s{S_J}')
        e(f's_lshl_b32 s{S_T+3}, s{S_T+3}, 7')
        e(f'v_mov_b32 v{V_P0+4}, s{S_T+2}')
        e(f's_add_u32 s{S_T+4}, s{S_T+3}, {GBA[k]}')
        e(f'v_mov_b32 v{V_P0+5}, s{S_T+4}')
        e('s_mov_b64 exec, 1')
        self.hstores([f'buffer_store_dword v{V_P0+4}, v{V_P0+5}, {srd(WS)}, 0 offen'])
        e('s_mov_b64 exec, -1')
        Lm = self.newlabel('L_cb')
        e(f's_cmp_lg_u32 s{S_J}, 0')
        e(f's_cbranch_scc1 {Lm}')
        e(f'v_and_b32 v{A}, 31, v{V_LANE}')
        e(f'v_lshlrev_b32 v{A}, 7, v{A}')
        e(f's_lshl_b32 s{S_T+4}, s{S_G}, 12')
        e(f's_add_u32 s{S_T+4}, s{S_T+4}, {GBA[k]}')
        e(f'v_add_u32 v{A}, s{S_T+4}, v{A}')
        self.poll(A, f's{S_T+2}')
        e(f's_lshl_b32 s{S_T+4}, s{S_G}, 7')
        e(f's_add_u32 s{S_T+4}, s{S_T+4}, {GBD[k]}')
        e(f'v_mov_b32 v{V_P0+4}, s{S_T+2}')
        e(f'v_mov_b32 v{V_P0+5}, s{S_T+4}')
        e('s_mov_b64 exec, 1')
        e(f'buffer_store_dword v{V_P0+4}, v{V_P0+5}, {srd(WS)}, 0 offen sc1')
        e('s_mov_b64 exec, -1')
        e(f'v_and_b32 v{A}, 7, v{V_LANE}')
        e(f'v_lshlrev_b32 v{A}, 5, v{A}')
        self.poll(A, None, rsrc=DBG, nonzero=True)
        e(f'v_and_b32 v{V_P0+5}, 0xfffffff0, v{V_P0}')
        e(f'v_or_b32 v{V_P0+5}, 1, v{V_P0+5}')
        e(f'v_and_b32 v{A}, 7, v{V_LANE}')
        e(f'v_lshlrev_b32 v{A}, 7, v{A}')
        e(f'v_add_u32 v{A}, {GBD[k]}, v{A}')
        self.poll(A, f'v{V_P0+5}')
        e(f'v_and_b32 v{A}, 31, v{V_LANE}')
        e(f'v_lshlrev_b32 v{A}, 7, v{A}')
        e(f's_lshl_b32 s{S_T+4}, s{S_G}, 12')
        e(f's_add_u32 s{S_T+4}, s{S_T+4}, {GBG[k]}')
        e(f'v_add_u32 v{A}, s{S_T+4}, v{A}')
        e(f'v_mov_b32 v{V_P0+4}, s{S_T+2}')
        e(f's_mov_b32 exec_hi, 0')
        self.hstores([f'buffer_store_dword v{V_P0+4}, v{A}, {srd(WS)}, 0 offen'])
        e(f's_mov_b32 exec_hi, -1')
        self.label(Lm)
        e(f's_add_u32 s{S_T+4}, s{S_T+3}, {GBG[k]}')
        e(f'v_mov_b32 v{A}, s{S_T+4}')
        self.poll(A, f's{S_T+2}')
    def lds_spin(self, addr, target):
        e = self.e
        L = self.newlabel('L_ls')
        e(f'v_mov_b32 v10, {addr}')
        e(f's_mov_b32 s{S_CNT}, 0')
        self.label(L)
        e(f'ds_read_b32 v11, v10')
        e('s_waitcnt lgkmcnt(0)')
        e(f'v_readfirstlane_b32 s{S_T+9}, v11')
        e(f's_add_u32 s{S_CNT}, s{S_CNT}, 1')
        e(f's_cmp_ge_u32 s{S_T+9}, {target}')
        e(f's_cbranch_scc1 {L}_d')
        e(f's_cmp_lt_u32 s{S_CNT}, 0x100000')
        e(f's_cbranch_scc1 {L}')
        self.label(L + '_d')
    def qload(self):
        e = self.e
        e(f's_lshr_b32 s{S_T+2}, s{S_W}, 2')
        e(f's_lshl_b32 s{S_T}, s{S_G}, 8')
        e(f's_lshl_b32 s{S_T+1}, s{S_T+2}, 7')
        e(f's_add_u32 s{S_T}, s{S_T}, s{S_T+1}')
        e(f's_lshl_b32 s{S_T+1}, s{S_J}, 2')
        e(f's_add_u32 s{S_T}, s{S_T}, s{S_T+1}')
        e(f's_and_b32 s{S_T+1}, s{S_W}, 3')
        e(f's_add_u32 s{S_T}, s{S_T}, s{S_T+1}')
        e(f's_lshl_b32 s{S_T}, s{S_T}, 10')
        e(f'buffer_load_dwordx4 v[{V_X}:{V_X+3}], v{V_L16}, {srd(Q)}, s{S_T} offen')
    def w13_dma_dense(self):
        e = self.e
        depth = self.WD
        e(f's_and_b32 s{S_T}, s{S_W}, 3')
        e(f's_mul_i32 s{S_T}, s{S_T}, {24*1024}')
        e(f's_lshl_b32 s{S_T+1}, s{S_SJ}, 15')
        e(f's_add_u32 s{S_T+1}, s{S_T+1}, s{S_T}')
        e(f's_add_u32 s{S_T+1}, s{S_T+1}, {W13F}')
        e(f's_add_u32 s{S_T}, s{S_T}, {WIM}')
        for q in range(24):
            e(f's_add_u32 m0, s{S_T}, {q*1024}')
            e(f's_add_u32 s{S_T+2}, s{S_T+1}, {q*1024}')
            e(f'buffer_load_dwordx4 v{V_L16}, {srd(WS)}, s{S_T+2} offen lds')
            if q + 1 >= depth: e(f's_waitcnt vmcnt({depth-1})')
    def global_sync(self):
        e = self.e
        self.c('---- global sync')
        e('s_waitcnt vmcnt(0)')
        e(f'v_mov_b32 v10, {CNT1}')
        self.sync4(10, 90, 11)
        self.stamp('y drained')
        e(f'v_mov_b32 v{V_P0+2}, {MBX}')
        e(f'ds_read_b64 v[{V_P0}:{V_P0+1}], v{V_P0+2}')
        e('s_waitcnt lgkmcnt(0)')
        e(f'v_readfirstlane_b32 s{S_MODE}, v{V_P0}')
        e(f'v_readfirstlane_b32 s{S_PH}, v{V_P0+1}')
        e(f's_and_b32 s{S_D0}, s{S_PH}, 0xfffffff0')
        L = self.newlabel('L_gs')
        e(f's_cmp_lg_u32 s{S_W}, 0')
        e(f's_cbranch_scc1 {L}')
        self.chip_barrier(0, S_D0)
        e(f'v_mov_b32 v10, {GDONE}')
        e(f'v_mov_b32 v11, 1')
        e(f'ds_write_b32 v10, v11')
        e('s_waitcnt lgkmcnt(0)')
        self.label(L)
        self.lds_spin(GDONE, 1)

    def unpack8(self, dst, src):
        for i in range(4):
            self.e(f'v_lshlrev_b32 v{dst+2*i}, 16, v{src+i}')
            self.e(f'v_and_b32 v{dst+2*i+1}, 0xffff0000, v{src+i}')
    def pack8(self, dst, src):
        for i in range(4):
            self.e(f'v_cvt_pk_bf16_f32 v{dst+i}, v{src+2*i}, v{src+2*i+1}')
    def layernorm(self, X, N, T):
        e = self.e
        S_, Q_ = T, T + 1
        e(f'v_add_f32 v{S_}, v{X}, v{X+1}')
        e(f'v_mul_f32 v{Q_}, v{X}, v{X}')
        e(f'v_add_f32 v{T+2}, v{X+2}, v{X+3}')
        e(f'v_mul_f32 v{T+3}, v{X+1}, v{X+1}')
        e(f'v_add_f32 v{T+4}, v{X+4}, v{X+5}')
        e(f'v_fmac_f32 v{Q_}, v{X+2}, v{X+2}')
        e(f'v_add_f32 v{T+5}, v{X+6}, v{X+7}')
        e(f'v_fmac_f32 v{T+3}, v{X+3}, v{X+3}')
        e(f'v_add_f32 v{S_}, v{S_}, v{T+2}')
        e(f'v_fmac_f32 v{Q_}, v{X+4}, v{X+4}')
        e(f'v_add_f32 v{T+4}, v{T+4}, v{T+5}')
        e(f'v_fmac_f32 v{T+3}, v{X+5}, v{X+5}')
        e(f'v_fmac_f32 v{Q_}, v{X+6}, v{X+6}')
        e(f'v_fmac_f32 v{T+3}, v{X+7}, v{X+7}')
        e(f'v_add_f32 v{S_}, v{S_}, v{T+4}')
        e(f'v_add_f32 v{Q_}, v{Q_}, v{T+3}')
        e('s_nop 0')
        for mode in ['row_shr:1', 'row_shr:2', 'row_shr:4', 'row_shr:8']:
            e(f'v_add_f32_dpp v{S_}, v{S_}, v{S_} {mode} row_mask:0xf bank_mask:0xf bound_ctrl:0')
            e(f'v_add_f32_dpp v{Q_}, v{Q_}, v{Q_} {mode} row_mask:0xf bank_mask:0xf bound_ctrl:0')
            e('s_nop 0')
        for mode, rm in [('row_bcast:15', '0xa'), ('row_bcast:31', '0xc')]:
            e(f'v_add_f32_dpp v{S_}, v{S_}, v{S_} {mode} row_mask:{rm} bank_mask:0xf')
            e(f'v_add_f32_dpp v{Q_}, v{Q_}, v{Q_} {mode} row_mask:{rm} bank_mask:0xf')
            e('s_nop 0')
        e(f'v_readlane_b32 s{S_T+1}, v{S_}, 63')
        e(f'v_readlane_b32 s{S_T+2}, v{Q_}, 63')
        e('s_nop 1')
        e(f'v_mov_b32 v{T+2}, s{S_T+1}')
        e(f'v_mov_b32 v{T+3}, s{S_T+2}')
        e(f'v_mul_f32 v{T+2}, 0x3b000000, v{T+2}')
        e(f'v_mul_f32 v{T+3}, 0x3b000000, v{T+3}')
        e(f'v_fma_f32 v{T+3}, -v{T+2}, v{T+2}, v{T+3}')
        e(f'v_max_f32 v{T+3}, 0, v{T+3}')
        e(f'v_add_f32 v{T+3}, 0x3727c5ac, v{T+3}')
        e(f'v_rsq_f32 v{T+3}, v{T+3}')
        e('s_nop 0')
        e(f'v_mul_f32 v{T+2}, v{T+2}, v{T+3}')
        for i in range(8):
            e(f'v_fma_f32 v{N+i}, v{X+i}, v{T+3}, -v{T+2}')
    def row_index(self, dst):
        e = self.e
        e(f's_lshl_b32 s{dst}, s{S_G}, 8')
        e(f's_lshl_b32 s{S_CNT}, s{S_SG}, 7')
        e(f's_add_u32 s{dst}, s{dst}, s{S_CNT}')
        e(f's_lshl_b32 s{S_CNT}, s{S_J}, 2')
        e(f's_add_u32 s{dst}, s{dst}, s{S_CNT}')
        e(f's_add_u32 s{dst}, s{dst}, s{S_U}')
    def r_tail(self, layer):
        e = self.e
        X, N, Y, T = 16, 24, 32, 40
        self.unpack8(Y, V_Y)
        for i in range(8): e(f'v_fmac_f32 v{X+i}, v{N+i}, v{Y+i}')
        self.pack8(V_X, X)
        self.unpack8(X, V_X)
        self.layernorm(X, N, T)
        self.pack8(8, N)
        e(f's_lshl_b32 s{S_T+3}, s{S_SG}, 15')
        e(f's_add_u32 s{S_T+3}, s{S_T+3}, {RSC + NTR}')
        e(f's_mul_i32 s{S_T+4}, s{S_U}, {10240 + 16}')
        e(f's_add_u32 s{S_T+4}, s{S_T+4}, s{S_T+3}')
        e(f'v_add_u32 v48, s{S_T+4}, v{V_L16}')
        e(f'ds_write_b128 v48, v[8:11]')
        e(f's_lshl_b32 s{S_T+4}, s{S_SG}, 4')
        e(f's_add_u32 s{S_T+4}, s{S_T+4}, {RCNT}')
        e(f'v_mov_b32 v49, s{S_T+4}')
        self.sync4(49, S_RC, 50)
        e(f'v_lshrrev_b32 v48, 2, v{V_LANE}')
        e(f's_lshl_b32 s{S_T+4}, s{S_U}, 4')
        e(f'v_add_u32 v48, s{S_T+4}, v48')
        e(f'v_lshlrev_b32 v48, 4, v48')
        e(f'v_and_b32 v49, 3, v{V_LANE}')
        e(f'v_mul_u32_u24 v49, {10240 + 16}, v49')
        e(f'v_add_u32 v48, v48, v49')
        e(f'v_add_u32 v48, s{S_T+3}, v48')
        e(f'ds_read_b128 v[8:11], v48')
        e(f's_lshl_b32 s{S_T+3}, s{S_G}, 3')
        e(f's_lshl_b32 s{S_T+4}, s{S_SG}, 2')
        e(f's_add_u32 s{S_T+3}, s{S_T+3}, s{S_T+4}')
        e(f's_lshr_b32 s{S_T+4}, s{S_J}, 3')
        e(f's_add_u32 s{S_T+3}, s{S_T+3}, s{S_T+4}')
        e(f's_lshl_b32 s{S_T+3}, s{S_T+3}, 15')
        e(f's_and_b32 s{S_T+4}, s{S_J}, 7')
        e(f's_lshl_b32 s{S_T+4}, s{S_T+4}, 7')
        e(f's_add_u32 s{S_T+3}, s{S_T+3}, s{S_T+4}')
        e(f's_lshl_b32 s{S_T+4}, s{S_U}, 13')
        e(f's_add_u32 s{S_T+3}, s{S_T+3}, s{S_T+4}')
        e(f's_add_u32 s{S_T+3}, s{S_T+3}, {N1}')
        e(f'v_lshrrev_b32 v48, 3, v{V_LANE}')
        e(f'v_lshlrev_b32 v48, 10, v48')
        e(f'v_and_b32 v49, 7, v{V_LANE}')
        e(f'v_lshl_add_u32 v48, v49, 4, v48')
        e('s_waitcnt lgkmcnt(0)')
        self.hstores([f'buffer_store_dwordx4 v[8:11], v48, {srd(WS)}, s{S_T+3} offen'], mode=S_HMODE)
        if layer == 1:
            self.row_index(S_T+5)
            e(f's_lshl_b32 s{S_T+5}, s{S_T+5}, 10')
            e(f's_add_u32 s{S_T+5}, s{S_T+5}, {X3}')
            e(f'buffer_store_dwordx4 v[{V_X}:{V_X+3}], v{V_L16}, {srd(WS)}, s{S_T+5} offen sc1')
    def r1(self):
        e = self.e
        self.c('==== R1')
        e(f's_lshr_b32 s{S_SG}, s{S_W}, 2')
        e(f's_and_b32 s{S_U}, s{S_W}, 3')
        e(f's_lshl_b32 s{S_FL}, s{S_G}, 1')
        e(f's_add_u32 s{S_FL}, s{S_FL}, s{S_SG}')
        e(f's_lshl_b32 s{S_FL}, s{S_FL}, 7')
        e(f's_lshl_b32 s{S_FO}, s{S_J}, 2')
        e(f's_add_u32 s{S_FO}, s{S_FO}, s{S_U}')
        e(f's_add_u32 s{S_FO}, s{S_FO}, s{S_FL}')
        e(f's_mov_b32 s{S_PH}, 1')
        e(f's_mov_b32 s{S_RC}, 0')
        e(f's_mov_b32 s{S_HMODE}, 0')
        e(f's_lshl_b32 s{S_T}, s{S_G}, 8')
        e(f's_lshl_b32 s{S_T+1}, s{S_SG}, 7')
        e(f's_add_u32 s{S_T}, s{S_T}, s{S_T+1}')
        e(f's_lshl_b32 s{S_T+1}, s{S_J}, 2')
        e(f's_add_u32 s{S_T}, s{S_T}, s{S_T+1}')
        e(f's_lshl_b32 s{S_T}, s{S_T}, 2')
        e(f's_add_u32 s{S_T}, s{S_T}, {Y2}')
        e(f's_lshl_b32 s{S_T+1}, s{S_U}, 6')
        e(f'v_add_u32 v2, s{S_T+1}, v{V_LANE}')
        e(f'v_lshlrev_b32 v4, 13, v2')
        e(f'buffer_load_dwordx4 v[8:11], v4, {srd(WS)}, s{S_T} offen sc1')
        e(f's_lshl_b32 s{S_T+6}, s{S_SG}, 15')
        e(f's_add_u32 s{S_T+6}, s{S_T+6}, {YSC}')
        e(f'v_lshlrev_b32 v6, 2, v2')
        e(f'v_add_u32 v6, s{S_T+6}, v6')
        X, N, T = 16, 24, 40
        self.unpack8(X, V_X)
        self.layernorm(X, N, T)
        e('s_waitcnt vmcnt(0)')
        for t in range(4): e(f'ds_write_b32 v6, v{8+t} offset:{t*SCR_P}')
        e(f's_lshl_b32 s{S_T+3}, s{S_SG}, 4')
        e(f's_add_u32 s{S_T+3}, s{S_T+3}, {YCNT}')
        e(f'v_mov_b32 v49, s{S_T+3}')
        e(f's_mov_b32 s{S_T+8}, 0')
        self.sync4(49, S_T+8, 50)
        e(f's_mul_i32 s{S_T}, s{S_U}, {SCR_P}')
        e(f's_add_u32 s{S_T}, s{S_T}, s{S_T+6}')
        e(f'v_add_u32 v6, s{S_T}, v{V_L16}')
        e(f'ds_read_b128 v[{V_Y}:{V_Y+3}], v6')
        e('s_waitcnt lgkmcnt(0)')
        self.r_tail(0)
        self.post_wflag()
        self.lds_spin(WRDY, 4)
    def r2(self):
        e = self.e
        self.c('==== R2')
        e(f's_and_b32 s{S_T+2}, s{S_J}, 16')
        e(f's_lshr_b32 s{S_T+3}, s{S_J}, 3')
        e(f's_and_b32 s{S_T+3}, s{S_T+3}, 1')
        e(f's_lshl_b32 s{S_T+3}, s{S_T+3}, 4')
        self.wait_wflags(16, S_T+2, S_T+3, 0xffff, 3)
        self.stamp('R2 polled')
        e(f's_lshl_b32 s{S_T+5}, s{S_G}, 3')
        e(f's_lshl_b32 s{S_T+4}, s{S_SG}, 2')
        e(f's_add_u32 s{S_T+5}, s{S_T+5}, s{S_T+4}')
        e(f's_lshr_b32 s{S_T+4}, s{S_J}, 3')
        e(f's_add_u32 s{S_T+5}, s{S_T+5}, s{S_T+4}')
        e(f's_lshl_b32 s{S_T+5}, s{S_T+5}, 15')
        e(f's_and_b32 s{S_T+4}, s{S_J}, 7')
        e(f's_lshl_b32 s{S_T+4}, s{S_T+4}, 2')
        e(f's_add_u32 s{S_T+4}, s{S_T+4}, s{S_U}')
        e(f's_lshl_b32 s{S_T+4}, s{S_T+4}, 5')
        e(f's_add_u32 s{S_T+5}, s{S_T+5}, s{S_T+4}')
        e(f's_add_u32 s{S_T+5}, s{S_T+5}, {O1}')
        e(f'v_lshrrev_b32 v12, 1, v{V_LANE}')
        e(f'v_lshlrev_b32 v12, 10, v12')
        e(f'v_and_b32 v13, 1, v{V_LANE}')
        e(f'v_lshl_add_u32 v12, v13, 4, v12')
        e(f'buffer_load_dwordx4 v[8:11], v12, {srd(WS)}, s{S_T+5} offen sc1')
        X, N, Y, T = 16, 24, 32, 40
        self.unpack8(X, V_X)
        e('s_waitcnt vmcnt(0)')
        self.unpack8(Y, 8)
        for i in range(8): e(f'v_add_f32 v{X+i}, v{X+i}, v{Y+i}')
        self.pack8(8, X)
        self.unpack8(X, 8)
        self.layernorm(X, N, T)
        self.r_tail(1)
        self.post_wflag()
        self.stamp('R2 posted')
    def g1a(self):
        e = self.e
        self.c('==== G1a: h = silu(n W1) * (n W3) ; wave = token tile 4*stream + u, 48 columns')
        Lskip = self.newlabel('L_g1a_skip')
        P = self.PA; RN = P + 2
        e(f's_cmp_gt_u32 s{S_J}, 28')
        e(f's_cbranch_scc1 {Lskip}')
        e(f's_lshl_b32 s{S_T+2}, s{S_U}, 3')
        e(f's_mul_i32 s{S_T+3}, s{S_LAYER}, 3')
        e(f's_add_u32 s{S_T+3}, s{S_T+3}, 1')
        self.wait_wflags(8, S_T+2, None, 0xffffffff, f'{S_T+3}')
        self.stamp('g1a polled')
        e(f's_lshl_b32 s{S_T}, s{S_G}, 3')
        e(f's_add_u32 s{S_T}, s{S_T}, s{S_W}')
        e(f's_mul_i32 s{S_T+1}, s{S_T}, 86')
        e(f's_lshl_b32 s{S_T}, s{S_T}, 15')
        e(f's_add_u32 s{S_T}, s{S_T}, {N1}')
        NB, ACC, AB = 4, 4 + 4*RN, 4 + 4*RN + 48
        NB = (NB + 1) & ~1
        assert AB + 36 <= 150
        e(f'v_bfe_u32 v151, v{V_LANE}, 2, 3')
        e(f'v_lshlrev_b32 v151, 7, v151')
        e(f'v_lshrrev_b32 v150, 5, v{V_LANE}')
        e(f'v_lshl_add_u32 v151, v150, 6, v151')
        e(f'v_and_b32 v150, 3, v{V_LANE}')
        e(f'v_lshl_add_u32 v151, v150, 4, v151')
        issued = []
        def nload(s_):
            r = NB + 4*(s_ % RN)
            e(f'buffer_load_dwordx4 v[{r}:{r+3}], v151, {srd(WS)}, s{S_T} offen offset:{(s_ % 4)*1024} sc1')
            if s_ % 4 == 3 and s_ != 31: e(f's_add_u32 s{S_T}, s{S_T}, 4096')
            issued.append(s_)
        for s_ in range(P): nload(s_)
        e(f's_add_u32 s{S_T+1}, s{S_T+1}, s{S_SJ}')
        e(f's_lshl_b32 s{S_T+1}, s{S_T+1}, 10')
        e(f's_add_u32 s{S_T+1}, s{S_T+1}, {H1}')
        e(f'v_add_u32 v2, {WIM}, v{V_L16}')
        e(f'v_add_u32 v3, {WIM + 65536}, v{V_L16}')
        def read(s_, jt):
            b = AB + (s_ % 3)*12
            off = (jt*32 + s_)*1024
            if jt == 2: e(f'ds_read_b128 v[{b+4*jt}:{b+4*jt+3}], v3 offset:{off - 65536}')
            else: e(f'ds_read_b128 v[{b+4*jt}:{b+4*jt+3}], v2 offset:{off}')
        for s_ in range(2):
            for jt in range(3): read(s_, jt)
        e('s_setprio 2')
        for s_ in range(32):
            younger = len(issued) - 1 - issued.index(s_)
            e(f's_waitcnt vmcnt({younger}) lgkmcnt({3 if s_ < 31 else 0})')
            if s_ in (0, 16): self.stamp(f'g1a step {s_}')
            b = AB + (s_ % 3)*12
            r = NB + 4*(s_ % RN)
            for jt in range(3):
                c = '0' if s_ == 0 else f'v[{ACC+16*jt}:{ACC+16*jt+15}]'
                e(f'v_mfma_f32_32x32x16_bf16 v[{ACC+16*jt}:{ACC+16*jt+15}], v[{b+4*jt}:{b+4*jt+3}], v[{r}:{r+3}], {c}')
                if s_ + 2 < 32: read(s_ + 2, jt)
                if jt == 0 and s_ + P < 32: nload(s_ + P)
        e('s_setprio 0')
        self.stamp('g1a mfma issued')
        self.nop(10)
        T = NB; HP = NB + 8
        for jt in range(3):
            g_, u_ = ACC + 16*jt, ACC + 16*jt + 8
            for i in range(8): e(f'v_mul_f32 v{T+i}, 0xbfb8aa3b, v{g_+i}')
            for i in range(8): e(f'v_exp_f32 v{T+i}, v{T+i}')
            for i in range(8): e(f'v_mul_f32 v{u_+i}, v{g_+i}, v{u_+i}')
            for i in range(8): e(f'v_add_f32 v{T+i}, 1.0, v{T+i}')
            for i in range(8): e(f'v_rcp_f32 v{T+i}, v{T+i}')
            e('s_nop 0')
            for i in range(8): e(f'v_mul_f32 v{u_+i}, v{u_+i}, v{T+i}')
            for i in range(4): e(f'v_cvt_pk_bf16_f32 v{HP+4*jt+i}, v{u_+2*i}, v{u_+2*i+1}')
        self.hstores([f'buffer_store_dwordx4 v[{HP+4*jt}:{HP+4*jt+3}], v{V_L16}, {srd(WS)}, s{S_T+1} offen offset:{1024*jt}' for jt in range(3)], mode=S_HMODE)
        self.stamp('g1a h stores issued')
        self.post_wflag()
        Lj = self.newlabel('L_g1a_j')
        e(f's_branch {Lj}')
        self.label(Lskip)
        e(f's_add_u32 s{S_PH}, s{S_PH}, 1')
        self.label(Lj)
        self.stamp('g1a posted')
    def g1b(self):
        e = self.e
        self.c('==== G1b: out tile 64 tok x 32 d per stream ; wave u = K quarter, W2 fragments in registers')
        P = self.PB; RH = P + 2
        HB_, ACC = 4, 4 + 8*RH
        assert ACC + 32 <= 120
        e(f's_mul_i32 s{S_T+8}, s{S_U}, 22')
        e(f's_cmp_eq_u32 s{S_U}, 3')
        e(f's_subb_u32 s{S_T+8}, s{S_T+8}, 0')
        Lw = self.newlabel('L_w2l')
        e(f's_cmp_lg_u32 s{S_LAYER}, 0')
        e(f's_cbranch_scc1 {Lw}')
        e(f's_and_b32 s{S_T}, s{S_J}, 15')
        e(f's_mul_i32 s{S_T}, s{S_T}, 86')
        e(f's_add_u32 s{S_T+1}, s{S_T}, 85')
        e(f's_add_u32 s{S_T}, s{S_T}, s{S_T+8}')
        e(f's_add_u32 s{S_T+2}, s{S_T}, 21')
        e(f's_min_u32 s{S_T+2}, s{S_T+2}, s{S_T+1}')
        e(f's_lshl_b32 s{S_T}, s{S_T}, 10')
        e(f's_add_u32 s{S_T}, s{S_T}, {W2F}')
        e(f's_lshl_b32 s{S_T+2}, s{S_T+2}, 10')
        e(f's_add_u32 s{S_T+2}, s{S_T+2}, {W2F}')
        for k_ in range(21):
            e(f'buffer_load_dwordx4 v[{V_W2+4*k_}:{V_W2+4*k_+3}], v{V_L16}, {srd(WS)}, s{S_T} offen offset:{(k_ % 4)*1024}')
            if k_ % 4 == 3: e(f's_add_u32 s{S_T}, s{S_T}, 4096')
        e(f'buffer_load_dwordx4 v[{V_W2+84}:{V_W2+87}], v{V_L16}, {srd(WS)}, s{S_T+2} offen')
        self.label(Lw)
        e(f's_mul_i32 s{S_T+2}, s{S_U}, 7')
        e(f's_lshr_b32 s{S_T+3}, s{S_J}, 4')
        e(f's_lshl_b32 s{S_T+5}, s{S_T+3}, 4')
        e(f's_lshl_b32 s{S_T+3}, s{S_T+3}, 1')
        e(f's_mul_i32 s{S_T+4}, s{S_LAYER}, 3')
        e(f's_add_u32 s{S_T+4}, s{S_T+4}, 2')
        self.wait_wflags(8, S_T+2, S_T+5, 0xffff, f'{S_T+4}')
        self.stamp('g1b polled')
        e(f's_lshl_b32 s{S_T}, s{S_G}, 3')
        e(f's_lshl_b32 s{S_T+1}, s{S_SG}, 2')
        e(f's_add_u32 s{S_T}, s{S_T}, s{S_T+1}')
        e(f's_add_u32 s{S_T}, s{S_T}, s{S_T+3}')
        e(f's_mul_i32 s{S_T}, s{S_T}, 86')
        e(f's_add_u32 s{S_T}, s{S_T}, s{S_T+8}')
        e(f's_lshl_b32 s{S_T}, s{S_T}, 10')
        e(f's_add_u32 s{S_T}, s{S_T}, {H1}')
        e(f's_add_u32 s{S_T+1}, s{S_T}, {86*1024}')
        e(f's_add_u32 s{S_T+4}, s{S_T}, {21*1024}')
        e(f's_add_u32 s{S_T+5}, s{S_T+1}, {21*1024}')
        e(f's_cmp_lt_u32 s{S_U}, 2')
        e(f's_cselect_b32 s{S_T+4}, s{S_T+4}, {WSSZ}')
        e(f's_cselect_b32 s{S_T+5}, s{S_T+5}, {WSSZ}')
        issued = []
        def hload(k_):
            for t in range(2):
                r = HB_ + 8*(k_ % RH) + 4*t
                if k_ == 21:
                    e(f'buffer_load_dwordx4 v[{r}:{r+3}], v{V_L16}, {srd(WS)}, s{S_T+4+t} offen sc1')
                else:
                    e(f'buffer_load_dwordx4 v[{r}:{r+3}], v{V_L16}, {srd(WS)}, s{S_T+t} offen offset:{(k_ % 4)*1024} sc1')
                issued.append((k_, t))
            if k_ % 4 == 3 and k_ < 21:
                e(f's_add_u32 s{S_T}, s{S_T}, 4096'); e(f's_add_u32 s{S_T+1}, s{S_T+1}, 4096')
        for k_ in range(P): hload(k_)
        e(f's_lshl_b32 s{S_T+6}, s{S_G}, 8')
        e(f's_lshl_b32 s{S_T+7}, s{S_SG}, 7')
        e(f's_add_u32 s{S_T+6}, s{S_T+6}, s{S_T+7}')
        e(f's_lshl_b32 s{S_T+7}, s{S_T+3}, 5')
        e(f's_add_u32 s{S_T+6}, s{S_T+6}, s{S_T+7}')
        e(f's_lshr_b32 s{S_T+7}, s{S_U}, 1')
        e(f's_lshl_b32 s{S_T+7}, s{S_T+7}, 5')
        e(f's_add_u32 s{S_T+6}, s{S_T+6}, s{S_T+7}')
        e(f's_lshl_b32 s{S_T+6}, s{S_T+6}, 10')
        e(f's_and_b32 s{S_T+7}, s{S_J}, 15')
        e(f's_lshl_b32 s{S_T+7}, s{S_T+7}, 6')
        e(f's_add_u32 s{S_T+6}, s{S_T+6}, s{S_T+7}')
        e(f's_and_b32 s{S_T+7}, s{S_U}, 1')
        e(f's_lshl_b32 s{S_T+7}, s{S_T+7}, 5')
        e(f's_add_u32 s{S_T+6}, s{S_T+6}, s{S_T+7}')
        e(f'v_and_b32 v2, 31, v{V_LANE}')
        e(f'v_lshlrev_b32 v2, 10, v2')
        e(f'v_lshrrev_b32 v3, 5, v{V_LANE}')
        e(f'v_lshl_add_u32 v2, v3, 4, v2')
        e('s_setprio 2')
        for k_ in range(22):
            younger = len(issued) - 1 - issued.index((k_, 1))
            e(f's_waitcnt vmcnt({younger})')
            if k_ in (0, 10): self.stamp(f'g1b step {k_}')
            for t in range(2):
                r = HB_ + 8*(k_ % RH) + 4*t
                c = '0' if k_ == 0 else f'v[{ACC+16*t}:{ACC+16*t+15}]'
                e(f'v_mfma_f32_32x32x16_bf16 v[{ACC+16*t}:{ACC+16*t+15}], v[{V_W2+4*k_}:{V_W2+4*k_+3}], v[{r}:{r+3}], {c}')
            if k_ + P < 22: hload(k_ + P)
        e('s_setprio 0')
        self.stamp('g1b mfma issued')
        XT = 120
        Lx = self.newlabel('L_x3')
        e(f's_cmp_eq_u32 s{S_LAYER}, 0')
        e(f's_cbranch_scc1 {Lx}')
        e(f's_add_u32 s{S_T}, s{S_T+6}, {X3}')
        e(f'buffer_load_dwordx4 v[{XT}:{XT+3}], v2, {srd(WS)}, s{S_T} offen sc1')
        self.label(Lx)
        e(f's_lshl_b32 s{S_T}, s{S_SG}, 15')
        e(f's_add_u32 s{S_T}, s{S_T}, {RSC}')
        e(f's_lshl_b32 s{S_T+1}, s{S_U}, 11')
        e(f's_add_u32 s{S_T+1}, s{S_T+1}, s{S_T}')
        e(f'v_add_u32 v3, s{S_T+1}, v{V_L16}')
        OWN = 124
        self.nop(6)
        for f in range(4):
            a = ACC + 16*(f >> 1) + 8*(f & 1)
            Lo = self.newlabel('L_own'); Ln = Lo + '_n'
            e(f's_cmp_eq_u32 s{S_U}, {f}')
            e(f's_cbranch_scc1 {Lo}')
            e(f'ds_write_b128 v3, v[{a}:{a+3}] offset:{f*8192}')
            e(f'ds_write_b128 v3, v[{a+4}:{a+7}] offset:{f*8192 + 1024}')
            e(f's_branch {Ln}')
            self.label(Lo)
            for i in range(8): e(f'v_mov_b32 v{OWN+i}, v{a+i}')
            self.label(Ln)
        e(f's_lshl_b32 s{S_T+2}, s{S_SG}, 4')
        e(f's_add_u32 s{S_T+2}, s{S_T+2}, {RCNT}')
        e(f'v_mov_b32 v4, s{S_T+2}')
        e(f'v_mov_b32 v5, 1')
        e(f's_add_u32 s{S_RC}, s{S_RC}, 4')
        e('s_waitcnt lgkmcnt(0)')
        e('s_mov_b64 exec, 1')
        e(f'ds_add_u32 v4, v5')
        e('s_mov_b64 exec, -1')
        L = self.newlabel('L_rw'); Ld = L + '_d'
        e(f's_mov_b32 s{S_CNT}, 0')
        self.label(L)
        e(f'ds_read_b32 v5, v4')
        e('s_waitcnt lgkmcnt(0)')
        e(f'v_readfirstlane_b32 s{S_T+2}, v5')
        e(f's_add_u32 s{S_CNT}, s{S_CNT}, 1')
        e(f's_cmp_ge_u32 s{S_T+2}, s{S_RC}')
        e(f's_cbranch_scc1 {Ld}')
        e(f's_cmp_lt_u32 s{S_CNT}, 0x100000')
        e(f's_cbranch_scc1 {L}')
        self.label(Ld)
        e(f's_lshl_b32 s{S_T+1}, s{S_U}, 13')
        e(f's_add_u32 s{S_T+1}, s{S_T+1}, s{S_T}')
        for d in range(1, 4):
            e(f's_add_u32 s{S_T+2}, s{S_U}, {d}')
            e(f's_and_b32 s{S_T+2}, s{S_T+2}, 3')
            e(f's_lshl_b32 s{S_T+2}, s{S_T+2}, 11')
            e(f's_add_u32 s{S_T+2}, s{S_T+2}, s{S_T+1}')
            e(f'v_add_u32 v5, s{S_T+2}, v{V_L16}')
            e(f'ds_read_b128 v[{4+8*d}:{7+8*d}], v5')
            e(f'ds_read_b128 v[{8+8*d}:{11+8*d}], v5 offset:1024')
        e('s_waitcnt lgkmcnt(0)')
        for i in range(8): e(f'v_add_f32 v{OWN+i}, v{OWN+i}, v{12+i}')
        for i in range(8): e(f'v_add_f32 v{20+i}, v{20+i}, v{28+i}')
        for i in range(8): e(f'v_add_f32 v{OWN+i}, v{OWN+i}, v{20+i}')
        self.pack8(40, OWN)
        e('s_nop 1')
        e(f'v_permlane32_swap_b32 v40, v42')
        e(f'v_permlane32_swap_b32 v41, v43')
        self.stamp('g1b reduced')
        Lo = self.newlabel('L_o')
        e(f's_cmp_eq_u32 s{S_LAYER}, 0')
        e(f's_cbranch_scc1 {Lo}')
        e('s_waitcnt vmcnt(0)')
        self.unpack8(8, 40)
        self.unpack8(16, XT)
        for i in range(8): e(f'v_add_f32 v{8+i}, v{8+i}, v{16+i}')
        self.pack8(40, 8)
        e(f'buffer_store_dwordx4 v[40:43], v2, {srd(OUT)}, s{S_T+6} offen')
        e('s_waitcnt vmcnt(0)')
        e('s_branch L_fin')
        self.label(Lo)
        e(f's_lshl_b32 s{S_T}, s{S_G}, 3')
        e(f's_lshl_b32 s{S_T+1}, s{S_SG}, 2')
        e(f's_add_u32 s{S_T}, s{S_T}, s{S_T+1}')
        e(f's_lshr_b32 s{S_T+1}, s{S_J}, 4')
        e(f's_lshl_b32 s{S_T+1}, s{S_T+1}, 1')
        e(f's_add_u32 s{S_T}, s{S_T}, s{S_T+1}')
        e(f's_lshr_b32 s{S_T+1}, s{S_U}, 1')
        e(f's_add_u32 s{S_T}, s{S_T}, s{S_T+1}')
        e(f's_lshl_b32 s{S_T}, s{S_T}, 4')
        e(f's_and_b32 s{S_T+1}, s{S_J}, 15')
        e(f's_add_u32 s{S_T}, s{S_T}, s{S_T+1}')
        e(f's_lshl_b32 s{S_T}, s{S_T}, 1')
        e(f's_and_b32 s{S_T+1}, s{S_U}, 1')
        e(f's_add_u32 s{S_T}, s{S_T}, s{S_T+1}')
        e(f's_lshl_b32 s{S_T}, s{S_T}, 10')
        e(f's_add_u32 s{S_T}, s{S_T}, {O1}')
        e(f'v_and_b32 v2, 31, v{V_LANE}')
        e(f'v_lshlrev_b32 v2, 5, v2')
        e(f'v_lshrrev_b32 v3, 5, v{V_LANE}')
        e(f'v_lshl_add_u32 v2, v3, 4, v2')
        e(f'buffer_store_dwordx4 v[40:43], v2, {srd(WS)}, s{S_T} offen sc1')
        self.post_wflag()
        self.stamp('g1b posted')

    def build(self):
        nm = KNAME
        e = self.e
        self.begin_kernel(nm)
        self.prologue()
        self.p1a()
        self.sync1()
        self.stamp('sync1 done')
        self.p1b()
        self.label('L_gsync')
        self.global_sync()
        self.stamp('global sync done')
        self.label('L_r1')
        if not self.maybe_stop('p1b'):
            self.r1()
            self.stamp('R1 done')
            e(f's_mov_b32 s{S_LAYER}, 0')
            if not self.maybe_stop('r1'):
                self.label('L_layer')
                self.g1a()
                if not self.maybe_stop('g1a'):
                    self.g1b()
                    if not self.maybe_stop('g1b'):
                        e(f's_mov_b32 s{S_HMODE}, s{S_MODE}')
                        self.r2()
                        e(f's_mov_b32 s{S_LAYER}, 1')
                        e('s_branch L_layer')
        self.label('L_fin')
        sf = self.stamp_filter; self.stamp_filter = None
        self.stamp('end')
        self.stamp_filter = sf
        self.dump_stamps()
        self.label('L_end')
        self.end_kernel(nm, 256, 102, 256)
        self.launch(nm, (256,1,1), (512,1,1), LDS_BYTES)
        return self.text(single=True)

if __name__ == '__main__':
    import argparse
    ap = argparse.ArgumentParser()
    ap.add_argument('-o', default='k.s')
    ap.add_argument('--stop', default=None)
    ap.add_argument('--stamps', action='store_true')
    ap.add_argument('--fast', action='store_true')
    ap.add_argument('--st', default=None)
    ap.add_argument('--opt', default='')
    a = ap.parse_args()
    g = Gen(stop=a.stop, stamps=a.stamps, fast=a.fast, stamp_filter=(a.st.split(',') if a.st else None), opts=[x for x in a.opt.split(',') if x])
    open(a.o, 'w').write(g.build())
    if a.stamps: print('stamps:', ','.join(g.stamp_names))
```
